```python
import torch

def _softmax(x, axis=-1):
    return torch.softmax(x, dim=axis)
def _gelu(x):
    return torch.nn.functional.gelu(x, approximate="tanh")
def _silu(x):
    return torch.nn.functional.silu(x)
def _sigmoid(x):
    return torch.sigmoid(x)
def _layernorm(x, axis=-1, eps=1e-5):
    m = x.mean(dim=axis, keepdim=True)
    v = x.var(dim=axis, keepdim=True, unbiased=False)
    return (x - m) / torch.sqrt(v + eps)
def _scatter_add(tgt, idx, src, axis=0):
    return tgt.clone().index_add_(axis, idx, src)
def _segment_sum(src, seg, n):
    out = torch.zeros((n,) + src.shape[1:], dtype=src.dtype)
    return out.index_add_(0, seg, src)
def _pad(x, pw):
    flat = tuple(v for pair in reversed(pw) for v in pair)
    return torch.nn.functional.pad(x, flat)

kernel_name = 'standalone__qk_norm__prompt'

def setup_inputs():

    _w = (lambda a: (lambda t: t.to(torch.bfloat16) if t.is_floating_point() else t)(torch.as_tensor(a)))
    B, H, S, D = 2, 16, 2048, 448
    Dh = D // H
    return {
        "q": _w((lambda *s: torch.randn(*s, dtype=torch.bfloat16) * 0.05)(B, H, S, Dh)),
        "k": _w((lambda *s: torch.randn(*s, dtype=torch.bfloat16) * 0.05)(B, H, S, Dh)),
        "v": _w((lambda *s: torch.randn(*s, dtype=torch.bfloat16) * 1.6)(B, H, S, Dh)),
        "t": _w(torch.abs((lambda *s: torch.randn(*s, dtype=torch.bfloat16) * 1.6)(H)) + 1.0),
    }

def reference(q, k, v, t):
    eps = 1e-6
    qn = q / (torch.sqrt((q * q).sum(axis=-1, keepdims=True)) + eps)
    kn = k / (torch.sqrt((k * k).sum(axis=-1, keepdims=True)) + eps)
    logits = torch.einsum('bhqd,bhkd->bhqk', qn, kn) * t[None, :, None, None]
    attn = _softmax(logits, axis=-1)
    return torch.einsum('bhqk,bhkd->bhqd', attn, v)
```

```python
import re

def regs_of(op):
    op = op.strip()
    op = op.lstrip('-')
    if op.startswith('|') and op.endswith('|'):
        op = op[1:-1]
    m = re.fullmatch(r'abs\((.*)\)', op)
    if m:
        op = m.group(1)
    m = re.fullmatch(r'([vsa])\[(\d+):(\d+)\]', op)
    if m:
        return {f"{m.group(1)}{i}" for i in range(int(m.group(2)), int(m.group(3)) + 1)}
    m = re.fullmatch(r'([vsa])(\d+)', op)
    if m:
        return {op}
    if op in ('vcc', 'exec', 'm0', 'scc'):
        return {op}
    return set()

TRANS = ('v_exp_f32', 'v_log_f32', 'v_rcp_f32', 'v_rsq_f32', 'v_sqrt_f32')

class Ins:
    def __init__(self, text):
        self.text = text
        t = text.split(';')[0].strip()
        self.label = t.endswith(':')
        self.dirv = t.startswith('.') or t == ''
        self.mn = t.split()[0] if t else ''
        rest = t[len(self.mn):].strip()
        ops = [o.strip() for o in rest.split(',')] if rest else []
        ops2 = []
        for o in ops:
            if o.startswith('op_sel') or re.match(r'^\d\]', o) or re.match(r'^\d\] ', o):
                continue
            ops2.append(o.split()[0] if o else o)
        self.ops = ops2
        self.defs = set(); self.uses = set()
        self.cls = 'other'
        self.passes = 0
        self.srcC = set(); self.srcAB = set()
        mn = self.mn
        if self.label or self.dirv:
            self.cls = 'none'; return
        R = [regs_of(o) for o in self.ops]
        if mn.startswith('v_mfma') or mn.startswith('v_smfmac'):
            self.cls = 'mfma'
            self.passes = 2 if '4x4x4' in mn else (8 if '32x32' in mn else 4)
            self.defs = R[0]
            if mn.startswith('v_mfma'):
                self.srcAB = R[1] | R[2]; self.srcC = R[3]
            else:
                self.srcAB = R[1] | R[2] | R[3]; self.srcC = R[0]
            self.uses = self.srcAB | self.srcC
        elif mn.startswith('v_'):
            self.cls = 'valu'
            if mn.startswith('v_cmp'):
                self.defs = R[0]; self.uses = set().union(*R[1:])
            elif mn.startswith('v_permlane32_swap'):
                self.defs = R[0] | R[1]; self.uses = R[0] | R[1]
            elif mn.startswith('v_readfirstlane') or mn.startswith('v_readlane'):
                self.defs = R[0]; self.uses = set().union(*R[1:])
            else:
                self.defs = R[0]; self.uses = set().union(*R[1:]) if len(R) > 1 else set()
                if mn.startswith('v_fmac') or mn.startswith('v_dot2c'):
                    self.uses |= R[0]
        elif mn.startswith('ds_'):
            self.cls = 'ds'
            if mn.startswith('ds_read'):
                self.defs = R[0]; self.uses = R[1]
            else:
                self.uses = set().union(*R)
        elif mn.startswith('buffer_') or mn.startswith('global_'):
            self.cls = 'vmem'
            if ' lds' in t:
                self.uses = set().union(*R) | {'m0'}
                self.lds = True
            elif 'load' in mn:
                self.defs = R[0]; self.uses = set().union(*R[1:])
            else:
                self.uses = set().union(*R)
                self.wide_store = ('x4' in mn or 'x3' in mn)
                self.sdata = R[0] if mn.startswith('buffer_') else R[1]
        elif mn.startswith('s_'):
            self.cls = 'salu'
            if mn in ('s_nop', 's_waitcnt', 's_barrier', 's_endpgm', 's_setprio', 's_sleep') or mn.startswith('s_cbranch') or mn == 's_branch':
                pass
            elif mn.startswith('s_cmp') or mn.startswith('s_bitcmp'):
                self.uses = set().union(*R)
            else:
                self.defs = R[0]; self.uses = set().union(*R[1:]) if len(R) > 1 else set()
    def states(self):
        if self.cls == 'none':
            return 0
        if self.mn == 's_nop':
            return int(self.ops[0], 0) + 1
        return 1
    def is_trans(self):
        return any(self.mn.startswith(x) for x in TRANS)
    def is_dot(self):
        return self.mn.startswith('v_dot')

def need(p, c):
    n = 0
    vdefs = {r for r in p.defs if r[0] in 'va' and r != 'vcc'}
    sdefs = {r for r in p.defs if r[0] == 's' or r == 'vcc'}
    if p.cls == 'valu':
        if c.cls == 'mfma' and vdefs & c.uses:
            n = max(n, 3 if p.is_dot() else 2)
        if p.is_trans() and c.cls == 'valu' and not c.is_trans() and vdefs & c.uses:
            n = max(n, 1)
        if p.is_dot() and c.cls in ('valu', 'ds', 'vmem') and (vdefs & (c.uses | c.defs)):
            same = (c.mn == p.mn)
            if same:
                ab = regs_of(c.ops[1]) | regs_of(c.ops[2])
                if vdefs & ab:
                    n = max(n, 3)
            else:
                n = max(n, 3)
        if c.mn.startswith('v_permlane') and vdefs & c.uses:
            n = max(n, 2)
        if (c.mn.startswith('v_readfirstlane') or c.mn.startswith('v_readlane')) and vdefs & c.uses:
            n = max(n, 1)
        if sdefs:
            if c.cls == 'vmem' and sdefs & c.uses:
                n = max(n, 5)
            if c.cls == 'valu' and sdefs & c.uses:
                n = max(n, 2)
            if c.cls == 'salu' and sdefs & c.uses:
                n = max(n, 1)
    if p.cls == 'mfma':
        P = p.passes
        t_ab = {2: 5, 4: 8, 8: 12}[P]
        t_ov = {2: 4, 4: 6, 8: 10}[P]
        t_same = {2: 2, 4: 0, 8: 0}[P]
        t_war = {2: 1, 4: 3, 8: 7}[P]
        if c.cls == 'mfma':
            if vdefs & c.srcAB:
                n = max(n, t_ab)
            if vdefs & c.srcC:
                if vdefs == c.srcC and c.passes == P:
                    n = max(n, t_same)
                else:
                    n = max(n, t_ov)
            elif vdefs & c.defs and c.passes != P:
                n = max(n, t_ov)
        elif c.cls in ('valu', 'ds', 'vmem'):
            if vdefs & (c.uses | c.defs):
                n = max(n, t_ab)
            if c.cls == 'valu' and p.srcC & c.defs:
                n = max(n, t_war)
    if p.cls == 'salu' and 'm0' in p.defs and c.cls == 'vmem' and 'm0' in c.uses:
        n = max(n, 1)
    if p.cls == 'vmem' and getattr(p, 'wide_store', False) and (p.sdata & c.defs):
        n = max(n, 2)
    return n

def check(lines, window=24):
    ins = [Ins(l) for l in lines]
    bad = []
    for i, c in enumerate(ins):
        if c.cls == 'none':
            continue
        d = 0
        j = i - 1
        while j >= 0 and d < window:
            p = ins[j]
            if p.cls != 'none':
                n = need(p, c)
                if n > d:
                    bad.append((j, i, n, d, p.text.strip(), c.text.strip()))
                d += p.states()
            j -= 1
    return bad
```

```python
import sys, os
sys.path.insert(0, os.path.dirname(__file__))
from hazard import check, Ins

NAME = "standalone__qk_norm__prompt"
TENSOR_BYTES = 2 * 16 * 2048 * 28 * 2
HEAD_BYTES = 2048 * 56

L_WAVE = 16384
L_Q = 131072
L_ONES = 147456
L_M = 151040
LDS_BYTES = 152064

V_LANE16 = 1; V_KOFF = 2; V_DMA3 = 3; V_TR = 4; V_TRINC = 5; V_IDX = 6; V_QA = 7
V_OW = 8; V_ORE = 9; V_ORO = 10; V_QB = 11; V_ID = 12
V_R = 14
V_T = 16
V_K = 32; V_V = 96; V_Q = (160, 168); V_O = (176, 192); V_S = (208, 224); V_P = 240

def vr(a, n=1):
    return f"v{a}" if n == 1 else f"v[{a}:{a+n-1}]"

class Opt:
    stamps = False
    prio = 0

def fix(lines):
    lines = list(lines)
    while True:
        bad = check(lines)
        if not bad:
            return lines
        j, i, n, d, p, c = min(bad, key=lambda b: b[1])
        need = max(b[2] - b[3] for b in bad if b[1] == i)
        lines.insert(i, f"    s_nop {need-1}")

def I(s):
    return "    " + s

def unpack(dst, src, q):
    return I(f"v_mfma_f32_4x4x4_16b_bf16 {vr(dst+4*q,4)}, {vr(V_ID,2)}, {vr(src+2*q,2)}, 0")

def knorm_pair(i):
    A = V_K + 16 * i; B = A + 8; T = V_T; rA = V_R; rB = V_R + 1
    o = []
    for d in range(7):
        o.append(I(f"v_dot2_f32_bf16 v{rA}, v{A+d}, v{A+d}, {'0' if d == 0 else 'v%d' % rA}"))
        o.append(I(f"v_dot2_f32_bf16 v{rB}, v{B+d}, v{B+d}, {'0' if d == 0 else 'v%d' % rB}"))
    o += [unpack(T, A, 0), unpack(T, A, 1), unpack(T, A, 2)]
    o.append(I(f"v_permlane32_swap_b32 v{rA}, v{rB}"))
    o.append(I(f"v_add_f32 v{rA}, v{rA}, v{rB}"))
    o.append(I(f"v_sqrt_f32 v{rA}, v{rA}"))
    o.append(unpack(T, A, 3))
    o.append(I(f"v_add_f32 v{rA}, 0x358637bd, v{rA}"))
    o.append(I(f"v_rcp_f32 v{rA}, v{rA}"))
    o.append(I(f"v_mov_b32 v{rB}, v{rA}"))
    o.append(I(f"v_permlane32_swap_b32 v{rA}, v{rB}"))
    for d in range(7):
        o.append(I(f"v_pk_mul_f32 {vr(T+2*d,2)}, {vr(T+2*d,2)}, {vr(V_R,2)} op_sel_hi:[1,0]"))
    for d in range(7):
        o.append(I(f"v_cvt_pk_bf16_f32 v{A+d}, v{T+2*d}, v{T+2*d+1}"))
        if d % 2 == 1 or d == 6:
            o.append(unpack(T, B, d // 2))
    for d in range(7):
        o.append(I(f"v_pk_mul_f32 {vr(T+2*d,2)}, {vr(T+2*d,2)}, {vr(V_R,2)} op_sel:[0,1]"))
    for d in range(7):
        o.append(I(f"v_cvt_pk_bf16_f32 v{B+d}, v{T+2*d}, v{T+2*d+1}"))
    return o

def qnorm(vc):
    A = V_Q[0]; T = V_T; r = V_R; r2 = V_R + 1
    o = []
    for d in range(7):
        o.append(I(f"v_dot2_f32_bf16 v{r}, v{A+d}, v{A+d}, {'0' if d == 0 else 'v%d' % r}"))
    o += [unpack(T, A, q) for q in range(4)]
    o.append(I(f"v_mov_b32 v{r2}, v{r}"))
    o.append(I(f"v_permlane32_swap_b32 v{r}, v{r2}"))
    o.append(I(f"v_add_f32 v{r}, v{r}, v{r2}"))
    o.append(I(f"v_sqrt_f32 v{r}, v{r}"))
    o.append(I(f"v_add_f32 v{r}, 0x358637bd, v{r}"))
    o.append(I(f"v_rcp_f32 v{r}, v{r}"))
    o.append(I(f"v_mul_f32 v{r}, v{vc}, v{r}"))
    for d in range(7):
        o.append(I(f"v_pk_mul_f32 {vr(T+2*d,2)}, {vr(T+2*d,2)}, {vr(V_R,2)} op_sel_hi:[1,0]"))
    for d in range(7):
        o.append(I(f"v_cvt_pk_bf16_f32 v{A+d}, v{T+2*d}, v{T+2*d+1}"))
    o.append(I(f"ds_write_b128 v{V_QA}, {vr(A,4)}"))
    o.append(I(f"ds_write_b128 v{V_QA}, {vr(A+4,4)} offset:1024"))
    return o

def tr_reads(i):
    o = []
    for t in range(2):
        base = V_V + 8 * (2 * i + t)
        for n, off in enumerate((0, 224, 896, 1120)):
            o.append(I(f"ds_read_b64_tr_b16 {vr(base+2*n,2)}, v{V_TR} offset:{off + 1792*t}"))
    return o

def QKa(task, s):
    kt, q = task
    return I(f"v_mfma_f32_32x32x16_bf16 {vr(V_S[s],16)}, {vr(V_K+8*kt,4)}, {vr(V_Q[q],4)}, 0")
def QKb(task, s):
    kt, q = task
    return I(f"v_mfma_f32_32x32x16_bf16 {vr(V_S[s],16)}, {vr(V_K+8*kt+4,4)}, {vr(V_Q[q]+4,4)}, {vr(V_S[s],16)}")
def PVa(task):
    kt, q = task
    return I(f"v_smfmac_f32_32x32x32_bf16 {vr(V_O[q],16)}, {vr(V_V+8*kt,4)}, {vr(V_P,8)}, v{V_IDX}")
def PVb(task):
    kt, q = task
    return I(f"v_smfmac_f32_32x32x32_bf16 {vr(V_O[q],16)}, {vr(V_V+8*kt+4,4)}, {vr(V_P+8,8)}, v{V_IDX}")

def period(prev, cur, nxt, s, ins=None, spread=None):
    e = [I(f"v_exp_f32 v{V_P+k}, v{V_S[s]+k}") for k in range(16)]
    base = [QKa(nxt, s ^ 1)] + e[0:4] + [QKb(nxt, s ^ 1)] + e[4:8] + \
           [PVb(prev) if prev else None] + e[8:12] + [PVa(cur)] + e[12:16]
    ins = dict(ins or {})
    if spread:
        n = len(spread)
        for k, l in enumerate(spread):
            pos = 1 + (k * 19) // n
            ins.setdefault(pos, [])
            ins[pos] = ins[pos] + [l]
    o = []
    for p in range(21):
        o += ins.get(p, [])
        if p < 20 and base[p]:
            o.append(base[p])
    return o

def o_write(q):
    return [I(f"ds_write_b128 v{V_OW}, {vr(V_O[q]+4*g,4)} offset:{4096*q + 1024*g}") for g in range(4)]
def o_read(q, va):
    return [I(f"ds_read_b128 {vr(V_O[q]+4*g,4)}, v{va} offset:{4096*q + 1024*g}") for g in range(4)]
def q_read(q):
    return [I("s_add_u32 s50, s50, 2048"), I("s_and_b32 s50, s50, 0x3fff"),
            I(f"v_add_u32 v{V_QA}, s50, v{V_QB}"),
            I(f"ds_read_b128 {vr(V_Q[q],4)}, v{V_QA}"),
            I(f"ds_read_b128 {vr(V_Q[q]+4,4)}, v{V_QA} offset:1024")]

def stamp(n):
    if not Opt.stamps:
        return []
    return [I(f"s_memtime s[{60+2*n}:{61+2*n}]")]

def prologue():
    o = []
    o += stamp(0)
    o += [I("s_cmp_ge_u32 s2, 256"), I("s_cbranch_scc1 L_end"),
          I("s_load_dwordx8 s[4:11], s[0:1], 0"),
          I("s_load_dwordx2 s[12:13], s[0:1], 32"),
          I("v_lshrrev_b32 v1, 6, v0"),
          I("v_and_b32 v0, 63, v0"),
          I("v_readfirstlane_b32 s3, v1"),
          I("s_and_b32 s32, s2, 7"),
          I("s_lshl_b32 s32, s32, 2"),
          I("s_bfe_u32 s33, s2, 0x20003"),
          I("s_add_u32 s32, s32, s33"),
          I("s_lshr_b32 s33, s2, 5"),
          I(f"s_mul_i32 s34, s32, {HEAD_BYTES}"),
          I("s_mul_i32 s35, s33, 14336"),
          I("s_add_u32 s35, s35, s34"),
          I("s_mul_i32 s36, s3, 1792"),
          I("s_add_u32 s36, s36, s35"),
          I("s_mul_i32 s37, s3, 14336"),
          I("s_add_u32 s37, s37, s34"),
          I("s_lshr_b32 s38, s33, 1")]
    for i in range(4):
        o += [I(f"s_add_u32 s39, s38, {i}"), I("s_and_b32 s39, s39, 3"), I("s_mul_i32 s39, s39, 3584"),
              I(f"s_add_u32 s{40+i}, s39, s37")]
    o += [I("s_and_b32 s15, s32, 14"), I("s_lshl_b32 s15, s15, 1"),
          I("s_lshl_b32 s44, s3, 14"),
          I(f"v_lshlrev_b32 v{V_LANE16}, 4, v0"),
          I("v_and_b32 v16, 31, v0"),
          I("v_lshrrev_b32 v17, 5, v0"),
          I("v_mul_u32_u24 v16, 56, v16"),
          I(f"v_mad_u32_u24 v{V_KOFF}, v17, 28, v16"),
          I(f"v_lshl_or_b32 v{V_DMA3}, v17, 30, v{V_LANE16}"),
          I("s_mov_b32 s18, %d" % TENSOR_BYTES), I("s_mov_b32 s19, 0x00020000"),
          I("s_mov_b32 s22, %d" % TENSOR_BYTES), I("s_mov_b32 s23, 0x00020000"),
          I("s_mov_b32 s26, %d" % TENSOR_BYTES), I("s_mov_b32 s27, 0x00020000"),
          I("s_mov_b32 s30, %d" % TENSOR_BYTES), I("s_mov_b32 s31, 0x00020000"),
          I("s_mov_b32 m0, s44"),
          I("s_waitcnt lgkmcnt(0)"),
          I("s_mov_b32 s16, s4"), I("s_mov_b32 s17, s5"),
          I("s_mov_b32 s20, s6"), I("s_mov_b32 s21, s7"),
          I("s_load_dword s14, s[10:11], s15"),
          I(f"buffer_load_dwordx4 {vr(V_Q[0],4)}, v{V_KOFF}, s[16:19], s36 offen"),
          I(f"buffer_load_dwordx3 {vr(V_Q[0]+4,3)}, v{V_KOFF}, s[16:19], s36 offen offset:16"),
          I("s_mov_b32 s24, s8"), I("s_mov_b32 s25, s9"),
          I("s_mov_b32 s28, s12"), I("s_mov_b32 s29, s13")]
    for i in range(4):
        o += loads_pair(i)
    o += stamp(1)
    o += [I("v_bfe_u32 v18, v0, 2, 2"),
          I("v_mul_u32_u24 v18, 56, v18"),
          I("v_mul_u32_u24 v19, 448, v17"),
          I("v_add3_u32 v18, v18, v19, s44"),
          I("v_and_b32 v19, 1, v0"),
          I("v_bfe_u32 v20, v0, 1, 1"),
          I("v_bfe_u32 v21, v0, 4, 1"),
          I("v_lshl_or_b32 v20, v21, 1, v20"),
          I("v_lshl_or_b32 v19, v19, 2, v20"),
          I("v_lshl_add_u32 v18, v19, 3, v18"),
          I("v_cmp_eq_u32 vcc, 7, v19"),
          I(f"v_mov_b32 v20, {L_ONES}"),
          I("v_mov_b32 v21, 4096"),
          I(f"v_cndmask_b32 v{V_TR}, v18, v20, vcc"),
          I(f"v_cndmask_b32 v{V_TRINC}, v21, 0, vcc"),
          I("v_and_b32 v18, 15, v0"),
          I("v_mul_u32_u24 v18, 224, v18"),
          I("v_add_u32 v18, v18, v20"),
          I("v_mov_b32 v22, 0x3f803f80"), I("v_mov_b32 v23, 0x3f803f80"),
          I("ds_write_b64 v18, v[22:23]"),
          I(f"v_mov_b32 v{V_IDX}, 0xdddddddd"),
          I("v_and_b32 v18, 1, v0"),
          I("v_lshlrev_b32 v18, 4, v18"),
          I("v_mov_b32 v19, 0x3f80"),
          I("v_lshlrev_b32 v18, v18, v19"),
          I("v_and_b32 v20, 2, v0"),
          I("v_cmp_eq_u32 vcc, 0, v20"),
          I(f"v_add_u32 v{V_QB}, {L_Q}, v{V_LANE16}"),
          I(f"v_add_u32 v{V_OW}, s44, v{V_LANE16}"),
          I(f"v_cndmask_b32 v{V_ID}, 0, v18, vcc"),
          I(f"v_cndmask_b32 v{V_ID+1}, v18, 0, vcc"),
          I("s_lshl_b32 s50, s3, 11"),
          I(f"v_add_u32 v{V_QA}, s50, v{V_QB}"),
          I("s_add_u32 s51, s44, 0x8000"), I("s_and_b32 s51, s51, 0x1ffff"),
          I("s_add_u32 s52, s44, 0x4000"), I("s_and_b32 s52, s52, 0x1ffff"),
          I(f"v_add_u32 v{V_ORE}, s51, v{V_LANE16}")]
    for kt in range(8):
        o.append(I(f"v_mov_b32 v{V_K+8*kt+7}, v19"))
    for q in range(2):
        for r in range(16):
            o.append(I(f"v_mov_b32 v{V_O[q]+r}, 0"))
    o += [I("s_waitcnt lgkmcnt(0)"),
          I("s_lshl_b32 s45, s14, 16"),
          I("s_and_b32 s46, s14, 0xffff0000"),
          I("s_and_b32 s47, s32, 1"),
          I("s_cselect_b32 s45, s46, s45"),
          I("v_mov_b32 v24, 0x3fb8aa3b"),
          I(f"v_mul_f32 v{V_P}, s45, v24"),
          I("s_and_b32 s46, s45, 0x7fffffff"),
          I("s_cmp_gt_u32 s46, 0x41800000"),
          I("s_cbranch_scc1 L_slow")]
    return o

def loads_pair(i):
    o = []
    for t in range(2):
        b = V_K + 8 * (2 * i + t)
        o.append(I(f"buffer_load_dwordx4 {vr(b,4)}, v{V_KOFF}, s[20:23], s{40+i} offen offset:{1792*t}"))
        o.append(I(f"buffer_load_dwordx3 {vr(b+4,3)}, v{V_KOFF}, s[20:23], s{40+i} offen offset:{1792*t+16}"))
    if i:
        o.insert(2, I("s_add_u32 m0, m0, 4096"))
    for n in range(4):
        o.append(I(f"buffer_load_dwordx4 v{V_LANE16 if n < 3 else V_DMA3}, s[24:27], s{40+i} offen offset:{1024*n} lds"))
    return o

def fast_head():
    o = [I(f"v_mul_f32 v24, -0.5, |v{V_P}|"),
         I(f"v_cvt_pk_bf16_f32 v{V_Q[0]+7}, v24, 0"),
         I("s_waitcnt vmcnt(32)")]
    o += stamp(2)
    o += qnorm(V_P)
    o += [I("s_waitcnt vmcnt(28)")]
    o += knorm_pair(0)
    o += [I("s_waitcnt lgkmcnt(0)"), I("s_barrier")]
    o += stamp(3)
    o += [QKa((0, 0), 0), QKb((0, 0), 0)]
    o += q_read(1)
    o += [I("s_waitcnt vmcnt(24)")]
    o += tr_reads(0)
    return o

def fused():
    tasks = []
    for i in range(4):
        tasks += [(2*i, 0), (2*i+1, 0), (2*i, 1), (2*i+1, 1)]
    tasks.append((0, 0))
    o = []
    for p in range(16):
        i, ph = divmod(p, 4)
        ins = {}; spread = None
        if ph == 0:
            ins[15] = [I("s_waitcnt lgkmcnt(0)")]
        if ph == 2 and i < 3:
            ins[1] = [I(f"s_waitcnt vmcnt({20 - 8*i})")]
            spread = knorm_pair(i + 1)
        if ph == 3 and i < 3:
            ins[1] = [I(f"v_add_u32 v{V_TR}, v{V_TRINC}, v{V_TR}"), I(f"s_waitcnt vmcnt({16 - 8*i})")]
            spread = tr_reads(i + 1)
        if p == 13:
            ins[2] = q_read(0)
        if p == 15:
            ins[0] = [I("s_waitcnt lgkmcnt(0)")]
            ins[4] = o_write(0)
            ins[18] = [I("s_waitcnt lgkmcnt(0)"), I("s_barrier")] + o_read(0, V_ORE)
        o += period(tasks[p-1] if p else None, tasks[p], tasks[p+1], p & 1, ins, spread)
    o += stamp(4)
    o += [I("s_mov_b32 s53, 3")]
    return o

def loop_body():
    o = []
    for q in range(2):
        for p in range(8):
            prev = (p - 1, q) if p else (7, q ^ 1)
            nxt = (p + 1, q) if p < 7 else (0, q ^ 1)
            ins = {}
            if p == 0:
                ins[15] = [I("s_waitcnt lgkmcnt(0)")]
            if p == 1:
                ins[4] = o_write(q ^ 1)
                ins[12] = q_read(q ^ 1)
            if p == 2 and q == 1:
                ins[2] = [I("s_cmp_eq_u32 s53, 1"), I("s_cselect_b32 s54, s52, s51"),
                          I(f"v_add_u32 v{V_ORO}, s54, v{V_LANE16}")]
            if p == 3:
                ins[2] = [I("s_waitcnt lgkmcnt(0)"), I("s_barrier")] + o_read(q ^ 1, V_ORE if q == 0 else V_ORO)
            if p == 7 and q == 1:
                ins[17] = [I("s_sub_u32 s53, s53, 1"), I("s_cmp_lg_u32 s53, 0")]
            o += period(prev, (p, q), nxt, p & 1, ins)
    return o

def epilogue_a():
    O = V_O[1]
    o = stamp(5)
    o += [I("s_nop 0"), PVb((7, 1)), I("s_waitcnt lgkmcnt(0)")]
    for r in range(0, 16, 2):
        o.append(I(f"v_pk_add_f32 {vr(O+r,2)}, {vr(O+r,2)}, {vr(V_O[0]+r,2)}"))
    return o

def epilogue_b():
    O = V_O[1]; T = V_T
    o = [I(f"v_mov_b32 v{V_R+1}, v{O+12}"), I(f"v_mov_b32 v{V_R}, v{O+12}"),
         I("s_add_u32 s3, s3, 7"), I("s_and_b32 s3, s3, 7"),
         I(f"v_permlane32_swap_b32 v{V_R+1}, v{V_R}"),
         I(f"v_rcp_f32 v{V_R}, v{V_R}"),
         I("s_mul_i32 s36, s3, 1792"), I("s_add_u32 s36, s36, s35"),
         I("v_lshrrev_b32 v17, 5, v0"),
         I(f"v_lshl_add_u32 v16, v17, 2, v{V_KOFF}"),
         I("v_lshl_or_b32 v17, v17, 30, v16")]
    for r in range(0, 16, 2):
        o.append(I(f"v_pk_mul_f32 {vr(O+r,2)}, {vr(O+r,2)}, {vr(V_R,2)} op_sel_hi:[1,0]"))
    for r in range(8):
        o.append(I(f"v_cvt_pk_bf16_f32 v{T+4+r}, v{O+2*r}, v{O+2*r+1}"))
    o += [I(f"buffer_store_dwordx4 {vr(T+4,4)}, v16, s[28:31], s36 offen"),
          I(f"buffer_store_dwordx2 {vr(T+8,2)}, v16, s[28:31], s36 offen offset:16"),
          I(f"buffer_store_dwordx2 {vr(T+10,2)}, v17, s[28:31], s36 offen offset:24")]
    if Opt.stamps:
        o += [I("s_waitcnt vmcnt(0)")] + stamp(6)
        o += [I("s_load_dwordx2 s[12:13], s[0:1], 48"), I("s_waitcnt lgkmcnt(0)"),
              I("s_mov_b32 s28, s12"), I("s_mov_b32 s29, s13"),
              I("s_lshr_b32 s44, s44, 14"), I("s_lshl_b32 s36, s2, 3"), I("s_add_u32 s36, s36, s44"),
              I("s_lshl_b32 s36, s36, 6"), I("v_mov_b32 v16, 0"), I("s_memrealtime s[74:75]"), I("s_waitcnt lgkmcnt(0)")]
        for n in range(8):
            o += [I(f"v_mov_b32 v20, s{60+2*n}"), I(f"v_mov_b32 v21, s{61+2*n}"),
                  I(f"buffer_store_dwordx2 v[20:21], v16, s[28:31], s36 offen offset:{8*n}"), I("s_nop 1")]
    return o

def slow_path():
    S = V_S[0]; VM = V_R; VA = V_T; VB = V_T + 1
    a = [I(f"v_mov_b32 v{V_Q[0]+7}, 0"), I("s_waitcnt vmcnt(0)")]
    a += qnorm(V_P)
    for i in range(4):
        a += knorm_pair(i)
        a += tr_reads(i)
        a.append(I(f"v_add_u32 v{V_TR}, v{V_TRINC}, v{V_TR}"))
    a += [I(f"v_and_b32 v{VA}, 31, v0"), I(f"v_lshlrev_b32 v{VA}, 2, v{VA}"),
          I(f"v_add_u32 v{VA}, {L_M}, v{VA}"),
          I("s_lshl_b32 s55, s3, 7"),
          I(f"v_add_u32 v{VB}, s55, v{VA}"),
          I(f"v_mov_b32 v{VM}, 0xff800000"),
          I(f"ds_write_b32 v{VB}, v{VM}"),
          I("s_waitcnt lgkmcnt(0)"), I("s_barrier"),
          I("s_lshl_b32 s55, s3, 12"),
          I(f"v_add_u32 v{VB}, s55, v{V_LANE16}")]
    a += [I(f"ds_write_b128 v{VB}, {vr(V_O[0],4)} offset:{1024*g}") for g in range(4)]
    a += [I("s_mov_b32 s53, 0"), I(f"v_mov_b32 v{V_QA}, v{V_QB}"), I(f"v_mov_b32 v{VB}, v{VA}")]
    b = [I(f"ds_read_b128 {vr(V_Q[0],4)}, v{V_QA}"), I(f"ds_read_b128 {vr(V_Q[0]+4,4)}, v{V_QA} offset:1024"),
         I(f"v_mov_b32 v{VM}, 0xff800000"), I("s_waitcnt lgkmcnt(0)")]
    for kt in range(8):
        b += [QKa((kt, 0), 0), QKb((kt, 0), 0)]
        for r in range(0, 16, 2):
            b.append(I(f"v_max3_f32 v{VM}, v{S+r}, v{S+r+1}, v{VM}"))
    b += [I(f"ds_max_f32 v{VB}, v{VM}"),
          I(f"v_add_u32 v{V_QA}, 2048, v{V_QA}"), I(f"v_add_u32 v{VB}, 128, v{VB}"),
          I("s_add_u32 s53, s53, 1"), I("s_cmp_lt_u32 s53, 8"), I("s_waitcnt lgkmcnt(0)")]
    c = [I("s_barrier"), I("s_mov_b32 s53, 0"), I(f"v_mov_b32 v{V_QA}, v{V_QB}"),
         I(f"v_mov_b32 v{VB}, v{V_LANE16}")]
    d = [I(f"ds_read_b128 {vr(V_Q[0],4)}, v{V_QA}"), I(f"ds_read_b128 {vr(V_Q[0]+4,4)}, v{V_QA} offset:1024"),
         I(f"ds_read_b32 v{VM}, v{VA}")]
    d += [I(f"v_mov_b32 v{V_O[0]+r}, 0") for r in range(16)]
    d += [I("s_waitcnt lgkmcnt(0)")]
    for kt in range(8):
        d += [QKa((kt, 0), 0), QKb((kt, 0), 0)]
        for r in range(16):
            d.append(I(f"v_sub_f32 v{V_P+r}, v{S+r}, v{VM}"))
        for r in range(16):
            d.append(I(f"v_exp_f32 v{V_P+r}, v{V_P+r}"))
        d += [PVa((kt, 0)), PVb((kt, 0))]
    for r in range(16):
        d.append(I(f"ds_add_f32 v{VB}, v{V_O[0]+r} offset:{1024*(r//4) + 4*(r%4)}"))
    d += [I(f"v_add_u32 v{V_QA}, 2048, v{V_QA}"), I(f"v_add_u32 v{VA}, 128, v{VA}"),
          I(f"v_add_u32 v{VB}, 4096, v{VB}"),
          I("s_add_u32 s53, s53, 1"), I("s_cmp_lt_u32 s53, 8"), I("s_waitcnt lgkmcnt(0)")]
    e = [I("s_barrier"), I("s_add_u32 s55, s3, 7"), I("s_and_b32 s55, s55, 7"), I("s_lshl_b32 s55, s55, 12"),
         I(f"v_add_u32 v{VB}, s55, v{V_LANE16}")]
    e += [I(f"ds_read_b128 {vr(V_O[1]+4*g,4)}, v{VB} offset:{1024*g}") for g in range(4)]
    e += [I("s_waitcnt lgkmcnt(0)")]
    a = fix(a); b = fix(b); d = fix(d)
    assert not check(a + b + b + c + d + d + e)
    return (["L_slow:"] + a + ["L_slow1:"] + b + [I("s_cbranch_scc1 L_slow1")] + c + ["L_slow2:"] + d +
            [I("s_cbranch_scc1 L_slow2")] + e + [I("s_branch L_fin")])

def build():
    pro = fix(prologue())
    head = fix(pro + fast_head() + fused())
    body = loop_body()
    br = [I("s_cbranch_scc1 L_loop")]
    if check(head + body + br + body + br):
        for b in check(head + body + br + body + br): print("HAZARD", b, file=sys.stderr)
        raise SystemExit(1)
    ea = fix(body + br + epilogue_a())[len(body) + 1:]
    eb = fix(ea + epilogue_b())[len(ea):]
    lines = head + ["L_loop:"] + body + br + ea + ["L_fin:"] + eb + ["L_end:", I("s_endpgm")] + slow_path()
    ref = open("cdna_kernels/%s.s.ref" % NAME).read().splitlines()
    hdr = [l for l in ref if l.startswith(";") and "@launch" not in l and "Override launch" not in l and "grid=ceil" not in l]
    out = hdr + [f"; @launch grid=(256,1,1) block=(512,1,1) lds={LDS_BYTES}",
                 "; generated by gen/gen.py",
                 '.amdgcn_target "amdgcn-amd-amdhsa--gfx950"', ".text", f".globl {NAME}_kernel", ".p2align 8",
                 f".type {NAME}_kernel,@function", f"{NAME}_kernel:"]
    out += lines
    out += ['.section .rodata,"a"', ".p2align 6", f".amdhsa_kernel {NAME}_kernel",
            "  .amdhsa_next_free_vgpr 256", "  .amdhsa_next_free_sgpr 96", "  .amdhsa_accum_offset 256",
            "  .amdhsa_group_segment_fixed_size 0", "  .amdhsa_kernarg_size 56", "  .amdhsa_user_sgpr_count 2",
            "  .amdhsa_user_sgpr_kernarg_segment_ptr 1", "  .amdhsa_system_sgpr_workgroup_id_x 1",
            ".end_amdhsa_kernel"]
    return "\n".join(out) + "\n"

if __name__ == "__main__":
    out = "cdna_kernels/%s.s" % NAME
    for a in sys.argv[1:]:
        if a == "--stamps": Opt.stamps = True
        elif a.startswith("-o"): out = a[2:]
    open(out, "w").write(build())
    print("wrote", out)
```

```python
import sys, os
sys.path.insert(0, os.path.dirname(__file__))
from hazard import check, Ins

NAME = "standalone__qk_norm__prompt"
TENSOR_BYTES = 2 * 16 * 2048 * 28 * 2
HEAD_BYTES = 2048 * 56

L_REG = 19456
O_Q = 16384
O_FLAG = 18432
L_ONES = 8 * L_REG
L_M = L_ONES + 3584
LDS_BYTES = L_M + 1024

V_LANE16 = 1; V_KOFF = 2; V_DMA3 = 3; V_TR = 4; V_TRINC = 5; V_IDX = 6; V_A = 7
V_FLAG = 8; V_POLL = 9; V_B = 11; V_ID = 12
V_R = 14
V_T = 16
V_K = 32; V_V = 96; V_Q = 160; V_O = 176; V_O1 = 192; V_S = (208, 224); V_P = 240

S_T = 92

def vr(a, n=1):
    return f"v{a}" if n == 1 else f"v[{a}:{a+n-1}]"

class Opt:
    stamps = False
    ks = "ijAABB01"
    vs = "ijAABB01"
    rot = 1
    split = 1
    p0 = 2
    early_bar = 0
    raise_at = 16
    align = 0

def fix(lines):
    lines = list(lines)
    while True:
        bad = check(lines)
        if not bad:
            return lines
        j, i, n, d, p, c = min(bad, key=lambda b: b[1])
        need = max(b[2] - b[3] for b in bad if b[1] == i)
        lines.insert(i, f"    s_nop {need-1}")

def I(s):
    return "    " + s

class VM:
    def __init__(self): self.q = []
    def issue(self, tag, lines):
        for l in lines:
            if l.strip().startswith("buffer_") or l.strip().startswith("global_"):
                self.q.append(tag)
        return lines
    def wait(self, tag):
        last = max(i for i, t in enumerate(self.q) if t == tag)
        return I(f"s_waitcnt vmcnt({len(self.q) - 1 - last})")

def unpack(dst, src, q):
    return I(f"v_mfma_f32_4x4x4_16b_bf16 {vr(dst+4*q,4)}, {vr(V_ID,2)}, {vr(src+2*q,2)}, 0")

def knorm_pair(i):
    A = V_K + 16 * i; B = A + 8; T = V_T; rA = V_R; rB = V_R + 1
    o = []
    for d in range(7):
        o.append(I(f"v_dot2_f32_bf16 v{rA}, v{A+d}, v{A+d}, {'0' if d == 0 else 'v%d' % rA}"))
        o.append(I(f"v_dot2_f32_bf16 v{rB}, v{B+d}, v{B+d}, {'0' if d == 0 else 'v%d' % rB}"))
    o += [unpack(T, A, 0), unpack(T, A, 1), unpack(T, A, 2)]
    o.append(I(f"v_permlane32_swap_b32 v{rA}, v{rB}"))
    o.append(I(f"v_add_f32 v{rA}, v{rA}, v{rB}"))
    o.append(I(f"v_sqrt_f32 v{rA}, v{rA}"))
    o.append(unpack(T, A, 3))
    o.append(I(f"v_add_f32 v{rA}, 0x358637bd, v{rA}"))
    o.append(I(f"v_rcp_f32 v{rA}, v{rA}"))
    o.append(I(f"v_mov_b32 v{rB}, v{rA}"))
    o.append(I(f"v_permlane32_swap_b32 v{rA}, v{rB}"))
    for d in range(7):
        o.append(I(f"v_pk_mul_f32 {vr(T+2*d,2)}, {vr(T+2*d,2)}, {vr(V_R,2)} op_sel_hi:[1,0]"))
    for d in range(7):
        o.append(I(f"v_cvt_pk_bf16_f32 v{A+d}, v{T+2*d}, v{T+2*d+1}"))
        if d % 2 == 1 or d == 6:
            o.append(unpack(T, B, d // 2))
    for d in range(7):
        o.append(I(f"v_pk_mul_f32 {vr(T+2*d,2)}, {vr(T+2*d,2)}, {vr(V_R,2)} op_sel:[0,1]"))
    for d in range(7):
        o.append(I(f"v_cvt_pk_bf16_f32 v{B+d}, v{T+2*d}, v{T+2*d+1}"))
    return o

def qnorm(vc):
    A = V_Q; T = V_T; r = V_R; r2 = V_R + 1
    o = []
    for d in range(7):
        o.append(I(f"v_dot2_f32_bf16 v{r}, v{A+d}, v{A+d}, {'0' if d == 0 else 'v%d' % r}"))
    o += [unpack(T, A, q) for q in range(4)]
    o.append(I(f"v_mov_b32 v{r2}, v{r}"))
    o.append(I(f"v_permlane32_swap_b32 v{r}, v{r2}"))
    o.append(I(f"v_add_f32 v{r}, v{r}, v{r2}"))
    o.append(I(f"v_sqrt_f32 v{r}, v{r}"))
    o.append(I(f"v_add_f32 v{r}, 0x358637bd, v{r}"))
    o.append(I(f"v_rcp_f32 v{r}, v{r}"))
    o.append(I(f"v_mul_f32 v{r}, v{vc}, v{r}"))
    for d in range(7):
        o.append(I(f"v_pk_mul_f32 {vr(T+2*d,2)}, {vr(T+2*d,2)}, {vr(V_R,2)} op_sel_hi:[1,0]"))
    for d in range(7):
        o.append(I(f"v_cvt_pk_bf16_f32 v{A+d}, v{T+2*d}, v{T+2*d+1}"))
    o.append(I(f"ds_write_b128 v{V_A}, {vr(A,4)} offset:{O_Q}"))
    o.append(I(f"ds_write_b128 v{V_A}, {vr(A+4,4)} offset:{O_Q+1024}"))
    return o

def tr_reads(i):
    o = []
    for t in range(2):
        base = V_V + 8 * (2 * i + t)
        for n, off in enumerate((0, 224, 896, 1120)):
            o.append(I(f"ds_read_b64_tr_b16 {vr(base+2*n,2)}, v{V_TR} offset:{off + 2048*t}"))
    return o

def QKa(kt):
    s = kt & 1
    return I(f"v_mfma_f32_32x32x16_bf16 {vr(V_S[s],16)}, {vr(V_K+8*kt,4)}, {vr(V_Q,4)}, 0")
def QKb(kt):
    s = kt & 1
    return I(f"v_mfma_f32_32x32x16_bf16 {vr(V_S[s],16)}, {vr(V_K+8*kt+4,4)}, {vr(V_Q+4,4)}, {vr(V_S[s],16)}")
def PVa(kt):
    return I(f"v_smfmac_f32_32x32x32_bf16 {vr(V_O,16)}, {vr(V_V+8*kt,4)}, {vr(V_P,8)}, v{V_IDX}")
def PVb(kt):
    return I(f"v_smfmac_f32_32x32x32_bf16 {vr(V_O,16)}, {vr(V_V+8*kt+4,4)}, {vr(V_P+8,8)}, v{V_IDX}")

def period(kt, ins=None, spread=None):
    s = kt & 1
    e = [I(f"v_exp_f32 v{V_P+k}, v{V_S[s]+k}") for k in range(16)]
    base = [QKa(kt+1) if kt < 7 else None] + e[0:4] + [QKb(kt+1) if kt < 7 else None] + e[4:8] + \
           [PVb(kt-1) if kt else None] + e[8:12] + [PVa(kt)] + e[12:16]
    ins = {k: list(v) for k, v in (ins or {}).items()}
    if spread:
        n = len(spread)
        for k, l in enumerate(spread):
            pos = 1 + (k * 19) // n
            ins.setdefault(pos, []).append(l)
    o = []
    for p in range(21):
        o += ins.get(p, [])
        if p < 20 and base[p]:
            o.append(base[p])
    return o

def stamp(n):
    if not Opt.stamps:
        return []
    return [I(f"s_memtime s[{60+2*n}:{61+2*n}]")]

def loads_k(i):
    b = V_K + 8 * i
    return [I(f"buffer_load_dwordx4 {vr(b,4)}, v{V_KOFF}, s[20:23], s{S_T+i} offen"),
            I(f"buffer_load_dwordx3 {vr(b+4,3)}, v{V_KOFF}, s[20:23], s{S_T+i} offen offset:16")]
def loads_v(i):
    return [I(f"s_add_u32 m0, s44, {2048*i}"), I("s_nop 0"),
            I(f"buffer_load_dwordx4 v{V_LANE16}, s[24:27], s{S_T+i} offen lds"),
            I(f"buffer_load_dwordx4 v{V_DMA3}, s[24:27], s{S_T+i} offen offset:1024 lds")]
def loads_at(vm, point):
    o = []
    for i in range(8):
        k = vm.issue(f"K{i//2}", loads_k(i)) if Opt.ks[i] == point else []
        if Opt.vs[i] == point:
            v = vm.issue(f"V{i//2}", loads_v(i))
            o += ([v[0]] + k + v[2:]) if k else v
        else:
            o += k
    return o

def prologue(vm):
    o = []
    o += stamp(0)
    if Opt.stamps:
        o += [I("s_memrealtime s[76:77]"), I("s_getreg_b32 s78, hwreg(HW_REG_XCC_ID)"), I("s_getreg_b32 s79, hwreg(HW_REG_HW_ID)")]
    o += [I("s_cmp_ge_u32 s2, 256"), I("s_cbranch_scc1 L_end"),
          I("s_load_dwordx8 s[4:11], s[0:1], 0"),
          I("s_load_dwordx2 s[12:13], s[0:1], 32"),
          I("v_lshrrev_b32 v1, 6, v0"),
          I("v_and_b32 v0, 63, v0"),
          I("v_readfirstlane_b32 s3, v1"),
          I(f"s_setprio {Opt.p0}"),
          I("s_and_b32 s32, s2, 7"),
          I("s_lshl_b32 s32, s32, 2"),
          I("s_bfe_u32 s33, s2, 0x20003"),
          I("s_add_u32 s32, s32, s33"),
          I("s_lshr_b32 s33, s2, 5"),
          I(f"s_mul_i32 s44, s3, {L_REG}"),
          I(f"v_lshlrev_b32 v{V_LANE16}, 4, v0"),
          I(f"v_mov_b32 v{V_FLAG}, 0"),
          I(f"v_add_u32 v{V_A}, s44, v{V_LANE16}"),
          I(f"ds_write_b32 v{V_A}, v{V_FLAG} offset:{O_FLAG}"),
          I(f"s_mul_i32 s34, s32, {HEAD_BYTES}"),
          I("s_mul_i32 s35, s33, 14336"),
          I("s_add_u32 s35, s35, s34"),
          I("s_mul_i32 s36, s3, 1792"),
          I("s_add_u32 s36, s36, s35"),
          I("s_mul_i32 s37, s3, 14336"),
          I("s_add_u32 s37, s37, s34")]
    if Opt.rot:
        for i in range(8):
            o += [I(f"s_add_u32 s39, s33, {i}"), I("s_and_b32 s39, s39, 7"), I("s_mul_i32 s39, s39, 1792"),
                  I(f"s_add_u32 s{S_T+i}, s39, s37")]
    else:
        for i in range(8):
            o += [I(f"s_add_u32 s{S_T+i}, s37, {1792*i}")]
    o += [I("s_and_b32 s15, s32, 14"), I("s_lshl_b32 s15, s15, 1"),
          I("v_and_b32 v16, 31, v0"),
          I("v_lshrrev_b32 v17, 5, v0"),
          I("v_mul_u32_u24 v16, 56, v16"),
          I(f"v_mad_u32_u24 v{V_KOFF}, v17, 28, v16"),
          I("v_cmp_gt_u32 vcc, 48, v0"),
          I("v_bfrev_b32 v18, 2"),
          I(f"v_cndmask_b32 v{V_DMA3}, v18, v{V_LANE16}, vcc"),
          I("s_mov_b32 s18, %d" % TENSOR_BYTES), I("s_mov_b32 s19, 0x00020000"),
          I("s_mov_b32 s22, %d" % TENSOR_BYTES), I("s_mov_b32 s23, 0x00020000"),
          I("s_mov_b32 s26, %d" % TENSOR_BYTES), I("s_mov_b32 s27, 0x00020000"),
          I("s_mov_b32 s30, %d" % TENSOR_BYTES), I("s_mov_b32 s31, 0x00020000"),
          I("s_waitcnt lgkmcnt(0)")]
    o += stamp(1)
    if Opt.early_bar:
        o += [I("s_barrier")]
    o += [I("s_mov_b32 s16, s4"), I("s_mov_b32 s17, s5"),
          I("s_mov_b32 s20, s6"), I("s_mov_b32 s21, s7")]
    o += vm.issue("Q", [
          I(f"buffer_load_dwordx4 {vr(V_Q,4)}, v{V_KOFF}, s[16:19], s36 offen"),
          I(f"buffer_load_dwordx3 {vr(V_Q+4,3)}, v{V_KOFF}, s[16:19], s36 offen offset:16")])
    o += [I("s_load_dword s14, s[10:11], s15"),
          I("s_mov_b32 s24, s8"), I("s_mov_b32 s25, s9"),
          I("s_mov_b32 s28, s12"), I("s_mov_b32 s29, s13")]
    o += loads_at(vm, "i")
    o += [I("v_bfe_u32 v18, v0, 2, 2"),
          I("v_mul_u32_u24 v18, 56, v18"),
          I("v_mul_u32_u24 v19, 448, v17"),
          I("v_add3_u32 v18, v18, v19, s44"),
          I("v_and_b32 v19, 1, v0"),
          I("v_bfe_u32 v20, v0, 1, 1"),
          I("v_bfe_u32 v21, v0, 4, 1"),
          I("v_lshl_or_b32 v20, v21, 1, v20"),
          I("v_lshl_or_b32 v19, v19, 2, v20"),
          I("v_lshl_add_u32 v18, v19, 3, v18"),
          I("v_cmp_eq_u32 vcc, 7, v19"),
          I(f"v_mov_b32 v20, {L_ONES}"),
          I("v_mov_b32 v21, 4096"),
          I(f"v_cndmask_b32 v{V_TR}, v18, v20, vcc"),
          I(f"v_cndmask_b32 v{V_TRINC}, v21, 0, vcc"),
          I("v_and_b32 v18, 5, v0"),
          I("v_mul_u32_u24 v18, 224, v18"),
          I("v_bfe_u32 v19, v0, 1, 1"),
          I("v_lshl_add_u32 v18, v19, 11, v18"),
          I("v_add_u32 v18, v18, v20"),
          I("v_mov_b32 v22, 0x3f803f80"), I("v_mov_b32 v23, 0x3f803f80"),
          I("ds_write_b64 v18, v[22:23]"),
          I(f"v_mov_b32 v{V_IDX}, 0xdddddddd"),
          I(f"v_mov_b32 v{V_B}, v{V_A}"),
          I("v_and_b32 v18, 1, v0"),
          I("v_lshlrev_b32 v18, 4, v18"),
          I("v_mov_b32 v19, 0x3f80"),
          I("v_lshlrev_b32 v18, v18, v19"),
          I("v_and_b32 v20, 2, v0"),
          I("v_cmp_eq_u32 vcc, 0, v20"),
          I("s_mov_b32 s53, 0"),
          I("s_mov_b32 s54, s3"),
          I("s_mov_b32 s57, 0x100000"),
          I(f"v_cndmask_b32 v{V_ID}, 0, v18, vcc"),
          I(f"v_cndmask_b32 v{V_ID+1}, v18, 0, vcc")]
    for kt in range(8):
        o.append(I(f"v_mov_b32 v{V_K+8*kt+7}, v19"))
    for r in range(0, 16, 2):
        o.append(I(f"v_mov_b64 {vr(V_O+r,2)}, 0"))
    if not Opt.early_bar:
        o += [I("s_barrier")]
    o += loads_at(vm, "j")
    o += stamp(2)
    o += [I("s_waitcnt lgkmcnt(0)")]
    o += [I("s_lshl_b32 s45, s14, 16"),
          I("s_and_b32 s46, s14, 0xffff0000"),
          I("s_and_b32 s47, s32, 1"),
          I("s_cselect_b32 s45, s46, s45"),
          I("v_mov_b32 v24, 0x3fb8aa3b"),
          I(f"v_mul_f32 v{V_P}, s45, v24"),
          I("s_and_b32 s46, s45, 0x7fffffff"),
          I("s_cmp_gt_u32 s46, 0x41800000"),
          I("s_cbranch_scc1 L_slow")]
    return o

def step0(vm):
    o = [I(f"v_mul_f32 v24, -0.5, |v{V_P}|"),
         I(f"v_cvt_pk_bf16_f32 v{V_Q+7}, v24, 0"),
         vm.wait("Q")]
    o += stamp(3)
    o += qnorm(V_P)
    o += loads_at(vm, "A")
    o += [vm.wait("K0")]
    o += knorm_pair(0)
    o += [QKa(0), QKb(0)]
    o += loads_at(vm, "B")
    o += [vm.wait("V0")]
    o += tr_reads(0)
    o += stamp(4)
    for p in range(8):
        i, ph = divmod(p, 2)
        ins = {}; spread = None
        if ph == 0:
            ins[15] = [I("s_waitcnt lgkmcnt(0)")]
            if i < 3:
                ins[1] = [vm.wait(f"K{i+1}")] + loads_at(vm, str(p))
                spread = knorm_pair(i + 1)
        else:
            if i < 3:
                ins[1] = [I(f"v_add_u32 v{V_TR}, v{V_TRINC}, v{V_TR}"), vm.wait(f"V{i+1}")] + loads_at(vm, str(p))
                spread = tr_reads(i + 1)
        o += period(p, ins, spread)
    o += stamp(5)
    return o

def boundary():
    a = ([I("s_memtime s[84:85]")] if Opt.stamps else []) + [
         I("s_setprio 3"), I("s_lshl_b32 s58, 1, s53"), PVb(7),
         I("s_add_u32 s53, s53, 1"),
         I("s_cmp_eq_u32 s53, 8"), I("s_cbranch_scc1 L_fin"),
         I("s_xor_b32 s54, s3, s53"), I("s_and_b32 s54, s54, 4"),
         I("s_add_u32 s55, s3, s53"), I("s_and_b32 s55, s55, 3"),
         I("s_or_b32 s54, s54, s55"), I(f"s_mul_i32 s55, s54, {L_REG}"),
         I("s_and_b32 s59, s53, 4"), I("s_lshl_b32 s59, s59, 10"), I("s_add_u32 s59, s59, s55"),
         I(f"v_mov_b32 v{V_FLAG}, s58")]
    a += [I(f"ds_write_b128 v{V_A}, {vr(V_O+4*g,4)} offset:{1024*g}") for g in range(4)]
    a += [I(f"ds_or_b32 v{V_B}, v{V_FLAG} offset:{O_FLAG}"),
          I(f"v_add_u32 v{V_B}, s55, v{V_LANE16}"),
          I(f"v_add_u32 v{V_A}, s59, v{V_LANE16}"),
          I("s_cmp_eq_u32 s53, 4"), I("s_cselect_b32 s58, 1, s58"),
          I("s_cmp_eq_u32 s53, 7"), I("s_cselect_b32 s58, 0x48, s58")]
    b = [I(f"ds_read_b32 v{V_POLL}, v{V_B} offset:{O_FLAG}"),
         I("s_waitcnt lgkmcnt(0)"),
         I(f"v_readfirstlane_b32 s56, v{V_POLL}"),
         I("s_nop 0"),
         I("s_and_b32 s56, s56, s58"),
         I("s_cmp_eq_u32 s56, s58")]
    c = ([I("s_memtime s[86:87]")] if Opt.stamps else []) + [
         I(f"ds_read_b128 {vr(V_Q,4)}, v{V_B} offset:{O_Q}"),
         I(f"ds_read_b128 {vr(V_Q+4,4)}, v{V_B} offset:{O_Q+1024}"),
         I("s_bitcmp1_b32 0x90, s53"), I("s_cbranch_scc1 L_special"), "L_oread:"]
    c += [I(f"ds_read_b128 {vr(V_O+4*g,4)}, v{V_A} offset:{1024*g}") for g in range(4)]
    c += ["L_go:"]
    if Opt.stamps:
        c += [I("s_waitcnt lgkmcnt(0)"), I("s_lshl_b32 m0, s53, 2"), I("s_nop 0"),
             I("v_writelane_b32 v10, s84, m0"), I("s_add_u32 m0, m0, 1"), I("s_nop 0"), I("v_writelane_b32 v10, s86, m0"),
             I("s_sub_u32 m0, m0, 3"), I("s_nop 0"), I("v_writelane_b32 v10, s88, m0")]
    c += [I("s_setprio 0"), I("s_waitcnt lgkmcnt(4)"), QKa(0), QKb(0)]
    sp = ["L_special:", I("s_cmp_eq_u32 s53, 4"), I("s_cbranch_scc1 L_zero")]
    sp += [I(f"ds_read_b128 {vr(V_O1+4*g,4)}, v{V_B} offset:{1024*g}") for g in range(4)]
    sp += [I("s_branch L_oread"), "L_zero:"]
    sp += [I(f"v_mov_b64 {vr(V_O+r,2)}, 0") for r in range(0, 16, 2)]
    sp += [I("s_waitcnt lgkmcnt(0)"), I("s_branch L_go")]
    return a, b, c, sp

def step():
    o = []
    for p in range(8):
        ins = {}
        if p == 0:
            ins[15] = [I("s_waitcnt lgkmcnt(0)")]
            ins.setdefault(Opt.raise_at, []).append(I("s_setprio 1"))
            if Opt.stamps:
                ins[Opt.raise_at].append(I("s_memtime s[88:89]"))
        o += period(p, ins)
    return o

def epilogue():
    O = V_O; T = V_T
    o = stamp(6)
    o += [I("s_mul_i32 s36, s54, 1792"), I("s_add_u32 s36, s36, s35"),
          I("v_lshrrev_b32 v17, 5, v0"),
          I(f"v_lshl_add_u32 v16, v17, 2, v{V_KOFF}"),
          I("v_lshl_or_b32 v17, v17, 30, v16")]
    for r in range(0, 16, 2):
        o.append(I(f"v_pk_add_f32 {vr(O+r,2)}, {vr(O+r,2)}, {vr(V_O1+r,2)}"))
    o += [
          I(f"v_mov_b32 v{V_R+1}, v{O+12}"), I(f"v_mov_b32 v{V_R}, v{O+12}"),
          I(f"v_permlane32_swap_b32 v{V_R+1}, v{V_R}"),
          I(f"v_rcp_f32 v{V_R}, v{V_R}")]
    for r in range(0, 16, 2):
        o.append(I(f"v_pk_mul_f32 {vr(O+r,2)}, {vr(O+r,2)}, {vr(V_R,2)} op_sel_hi:[1,0]"))
    for r in range(8):
        o.append(I(f"v_cvt_pk_bf16_f32 v{T+4+r}, v{O+2*r}, v{O+2*r+1}"))
    o += [I(f"buffer_store_dwordx4 {vr(T+4,4)}, v16, s[28:31], s36 offen"),
          I(f"buffer_store_dwordx2 {vr(T+8,2)}, v16, s[28:31], s36 offen offset:16"),
          I(f"buffer_store_dwordx2 {vr(T+10,2)}, v17, s[28:31], s36 offen offset:24")]
    if Opt.stamps:
        o += [I("s_waitcnt vmcnt(0)")] + stamp(7) + [I("s_memrealtime s[80:81]")]
        o += [I("s_load_dwordx2 s[12:13], s[0:1], 48"), I("s_waitcnt lgkmcnt(0)"),
              I("s_mov_b32 s28, s12"), I("s_mov_b32 s29, s13"),
              I("s_lshl_b32 s36, s2, 3"), I("s_add_u32 s36, s36, s3"),
              I("s_lshl_b32 s36, s36, 7"), I("v_mov_b32 v16, 0")]
        for n in range(11):
            o += [I(f"v_mov_b32 v20, s{60+2*n}"), I(f"v_mov_b32 v21, s{61+2*n}"),
                  I(f"buffer_store_dwordx2 v[20:21], v16, s[28:31], s36 offen offset:{8*n}"), I("s_nop 1")]
        o += [I("v_writelane_b32 v10, s88, 30"), I("s_lshl_b32 s36, s36, 1"), I("s_add_u32 s36, s36, 0x100000"),
              I("v_lshlrev_b32 v16, 2, v0"), I("buffer_store_dword v10, v16, s[28:31], s36 offen")]
    return o

def slow_path():
    VM_ = V_R; VA = V_T; VB = V_T + 1
    a = [I(f"v_mov_b32 v{V_Q+7}, 0")]
    for i in range(8):
        if Opt.ks[i] not in "ij":
            a += loads_k(i)
        if Opt.vs[i] not in "ij":
            a += loads_v(i)
    a += [I("s_waitcnt vmcnt(0)")]
    a += qnorm(V_P)
    for i in range(4):
        a += knorm_pair(i)
        a += tr_reads(i)
        a.append(I(f"v_add_u32 v{V_TR}, v{V_TRINC}, v{V_TR}"))
    a += [I(f"v_and_b32 v{VA}, 31, v0"), I(f"v_lshlrev_b32 v{VA}, 2, v{VA}"),
          I(f"v_add_u32 v{VA}, {L_M}, v{VA}"),
          I("s_lshl_b32 s55, s3, 7"),
          I(f"v_add_u32 v{VB}, s55, v{VA}"),
          I(f"v_mov_b32 v{VM_}, 0xff800000"),
          I(f"ds_write_b32 v{VB}, v{VM_}"),
          I("s_waitcnt lgkmcnt(0)")]
    a += [I(f"ds_write_b128 v{V_A}, {vr(V_O,4)} offset:{1024*g}") for g in range(4)]
    a += [I("s_waitcnt lgkmcnt(0)"), I("s_barrier"),
          I("s_mov_b32 s53, 0"), I(f"v_mov_b32 v{V_POLL}, v{V_LANE16}"), I(f"v_mov_b32 v{VB}, v{VA}")]
    rq = [I(f"ds_read_b128 {vr(V_Q,4)}, v{V_POLL} offset:{O_Q}"), I(f"ds_read_b128 {vr(V_Q+4,4)}, v{V_POLL} offset:{O_Q+1024}")]
    b = rq + [I(f"v_mov_b32 v{VM_}, 0xff800000"), I("s_waitcnt lgkmcnt(0)")]
    for kt in range(8):
        S = V_S[kt & 1]
        b += [QKa(kt), QKb(kt)]
        for r in range(0, 16, 2):
            b.append(I(f"v_max3_f32 v{VM_}, v{S+r}, v{S+r+1}, v{VM_}"))
    b += [I(f"ds_max_f32 v{VB}, v{VM_}"),
          I(f"v_add_u32 v{V_POLL}, {L_REG}, v{V_POLL}"), I(f"v_add_u32 v{VB}, 128, v{VB}"),
          I("s_add_u32 s53, s53, 1"), I("s_cmp_lt_u32 s53, 8"), I("s_waitcnt lgkmcnt(0)")]
    c = [I("s_barrier"), I("s_mov_b32 s53, 0"), I(f"v_mov_b32 v{V_POLL}, v{V_LANE16}")]
    d = rq + [I(f"ds_read_b32 v{VM_}, v{VA}")]
    d += [I(f"v_mov_b32 v{V_O+r}, 0") for r in range(16)]
    d += [I("s_waitcnt lgkmcnt(0)")]
    for kt in range(8):
        S = V_S[kt & 1]
        d += [QKa(kt), QKb(kt)]
        for r in range(16):
            d.append(I(f"v_sub_f32 v{V_P+r}, v{S+r}, v{VM_}"))
        for r in range(16):
            d.append(I(f"v_exp_f32 v{V_P+r}, v{V_P+r}"))
        d += [PVa(kt), PVb(kt)]
    for r in range(16):
        d.append(I(f"ds_add_f32 v{V_POLL}, v{V_O+r} offset:{1024*(r//4) + 4*(r%4)}"))
    d += [I(f"v_add_u32 v{V_POLL}, {L_REG}, v{V_POLL}"), I(f"v_add_u32 v{VA}, 128, v{VA}"),
          I("s_add_u32 s53, s53, 1"), I("s_cmp_lt_u32 s53, 8"), I("s_waitcnt lgkmcnt(0)")]
    e = [I("s_barrier")]
    e += [I(f"ds_read_b128 {vr(V_O+4*g,4)}, v{V_A} offset:{1024*g}") for g in range(4)]
    e += [I(f"v_mov_b64 {vr(V_O1+r,2)}, 0") for r in range(0, 16, 2)]
    e += [I("s_waitcnt lgkmcnt(0)")]
    a = fix(a); b = fix(b); d = fix(d)
    assert not check(a + b + b + c + d + d + e)
    return (["L_slow:"] + a + ["L_slow1:"] + b + [I("s_cbranch_scc1 L_slow1")] + c + ["L_slow2:"] + d +
            [I("s_cbranch_scc1 L_slow2")] + e + [I("s_branch L_fin")])

def build():
    vm = VM()
    head = fix(prologue(vm) + step0(vm))
    ba, bb, bc, sp = boundary()
    st = step()
    brp = [I("s_cbranch_scc0 L_retry")]
    brl = [I("s_branch L_bound")]
    ba = fix(st + brl + ba)[len(st) + 1:]
    cs = fix(bc + st)
    ep = epilogue()
    k = [i for i, l in enumerate(ba) if "L_fin" in l][0]
    ep = fix(ba[:k+1] + ep)[k+1:]
    for seq in (head + ba + bb + brp + bb + brp + cs + brl + ba, head + ba[:k+1] + ep):
        bad = check(seq)
        if bad:
            for b in bad: print("HAZARD", b, file=sys.stderr)
            raise SystemExit(1)
    al = [f".p2align {Opt.align}"] if Opt.align else []
    lines = (head + al + ["L_bound:"] + ba + ["L_poll:"] + bb + brp + cs + brl + ["L_fin:"] + ep +
             ["L_end:", I("s_endpgm"),
              "L_retry:", I("s_sub_u32 s57, s57, 1"), I("s_cbranch_scc0 L_poll"), I("s_endpgm")] + sp + slow_path())
    ref = open("cdna_kernels/%s.s.ref" % NAME).read().splitlines()
    hdr = [l for l in ref if l.startswith(";") and "@launch" not in l and "Override launch" not in l and "grid=ceil" not in l]
    out = hdr + [f"; @launch grid=(256,1,1) block=(512,1,1) lds={LDS_BYTES}",
                 "; generated by gen/gen.py",
                 '.amdgcn_target "amdgcn-amd-amdhsa--gfx950"', ".text", f".globl {NAME}_kernel", ".p2align 8",
                 f".type {NAME}_kernel,@function", f"{NAME}_kernel:"]
    out += lines
    out += ['.section .rodata,"a"', ".p2align 6", f".amdhsa_kernel {NAME}_kernel",
            "  .amdhsa_next_free_vgpr 256", "  .amdhsa_next_free_sgpr 102", "  .amdhsa_accum_offset 256",
            "  .amdhsa_group_segment_fixed_size 0", "  .amdhsa_kernarg_size 56", "  .amdhsa_user_sgpr_count 2",
            "  .amdhsa_user_sgpr_kernarg_segment_ptr 1", "  .amdhsa_system_sgpr_workgroup_id_x 1",
            ".end_amdhsa_kernel"]
    return "\n".join(out) + "\n"

if __name__ == "__main__":
    out = "cdna_kernels/%s.s" % NAME
    for a in sys.argv[1:]:
        if a == "--stamps": Opt.stamps = True
        elif a.startswith("-o"): out = a[2:]
        elif a.startswith("--"):
            k, v = a[2:].split("=")
            cur = getattr(Opt, k)
            setattr(Opt, k, type(cur)(v) if not isinstance(cur, bool) else bool(int(v)))
    open(out, "w").write(build())
    print("wrote", out)
```
